```python
import torch

def _softmax(x, axis=-1):
    return torch.softmax(x, dim=axis)
def _gelu(x):
    return torch.nn.functional.gelu(x, approximate="tanh")
def _silu(x):
    return torch.nn.functional.silu(x)
def _sigmoid(x):
    return torch.sigmoid(x)
def _layernorm(x, axis=-1, eps=1e-5):
    m = x.mean(dim=axis, keepdim=True)
    v = x.var(dim=axis, keepdim=True, unbiased=False)
    return (x - m) / torch.sqrt(v + eps)
def _scatter_add(tgt, idx, src, axis=0):
    return tgt.clone().index_add_(axis, idx, src)
def _segment_sum(src, seg, n):
    out = torch.zeros((n,) + src.shape[1:], dtype=src.dtype)
    return out.index_add_(0, seg, src)
def _pad(x, pw):
    flat = tuple(v for pair in reversed(pw) for v in pair)
    return torch.nn.functional.pad(x, flat)

kernel_name = 'recurrent_scan__compressed_kv_cla__dense_activation_gelu__decode'

def setup_inputs():

    _w = (lambda a: (lambda t: t.to(torch.bfloat16) if t.is_floating_point() else t)(torch.as_tensor(a)))
    def _A_setup():
        B, H, Sq, Sk, D, M = 2, 32, 1, 4096, 128, 512
        Dc = 4 * D
        return {
            "x": _w((lambda *s: torch.randn(*s, dtype=torch.bfloat16) * 0.1)(B, Sq, M)),
            "c_kv": _w((lambda *s: torch.randn(*s, dtype=torch.bfloat16) * 3.2)(B, Sk, Dc)),
            "w_q": _w((lambda *s: torch.randn(*s, dtype=torch.bfloat16) * 0.8)(M, H, D) * (M ** -0.5)),
            "w_uk": _w((lambda *s: torch.randn(*s, dtype=torch.bfloat16) * 0.8)(Dc, H, D) * (Dc ** -0.5)),
            "w_uv": _w((lambda *s: torch.randn(*s, dtype=torch.bfloat16) * 3.2)(Dc, H, D) * (Dc ** -0.5)),
            "w_o": _w((lambda *s: torch.randn(*s, dtype=torch.bfloat16) * 3.2)(H, D, M) * ((H * D) ** -0.5)),
        }
    _A_in = _A_setup()

    def _B_setup():
        B, S, D, F = 2, 1, 512, 1376
        return {
            "x": _w((lambda *s: torch.randn(*s, dtype=torch.bfloat16) * 0.1)(B, S, D)),
            "w1": _w((lambda *s: torch.randn(*s, dtype=torch.bfloat16) * 3.2)(D, F) * (D ** -0.5)),
            "b1": _w((lambda *s: torch.randn(*s, dtype=torch.bfloat16) * 3.2)(F) * 0.01),
            "w2": _w((lambda *s: torch.randn(*s, dtype=torch.bfloat16) * 3.2)(F, D) * (F ** -0.5)),
            "b2": _w((lambda *s: torch.randn(*s, dtype=torch.bfloat16) * 3.2)(D) * 0.01),
        }
    _B_in = _B_setup()

    return {
        "A_x": _A_in["x"],
        "A_c_kv": _A_in["c_kv"],
        "A_w_q": _A_in["w_q"],
        "A_w_uk": _A_in["w_uk"],
        "A_w_uv": _A_in["w_uv"],
        "A_w_o": _A_in["w_o"],
        "B_x": _B_in["x"],
        "B_w1": _B_in["w1"],
        "B_b1": _B_in["b1"],
        "B_w2": _B_in["w2"],
        "B_b2": _B_in["b2"],
    }

def reference(A_x, A_c_kv, A_w_q, A_w_uk, A_w_uv, A_w_o, B_x, B_w1, B_b1, B_w2, B_b2):
    def _A_ref(x, c_kv, w_q, w_uk, w_uv, w_o):
        B, Sq, M = x.shape[0], x.shape[1], x.shape[2]
        Sk = c_kv.shape[1]
        H, D = w_q.shape[1], w_q.shape[2]
        q = torch.einsum("bqm,mhd->bhqd", x, w_q)
        k = torch.einsum("bkc,chd->bhkd", c_kv, w_uk)
        v = torch.einsum("bkc,chd->bhkd", c_kv, w_uv)
        scores = torch.einsum("bhqd,bhkd->bhqk", q, k) * (D ** -0.5)
        off = Sk - Sq
        qi = torch.arange(Sq)[:, None]
        kj = torch.arange(Sk)[None, :]
        cmask = kj <= (qi + off)
        scores = torch.where(cmask[None, None], scores, -1e9)
        p = _softmax(scores, axis=-1)
        ctx = torch.einsum("bhqk,bhkd->bhqd", p, v)
        return torch.einsum("bhqd,hdm->bqm", ctx, w_o)

    def _B_ref(x, w1, b1, w2, b2):
        h = torch.einsum("bsd,df->bsf", x, w1) + b1
        h = _gelu(h)
        return torch.einsum("bsf,fd->bsd", h, w2) + b2

    x = A_x
    xn = _layernorm(x, axis=-1)
    s = _A_ref(xn, A_c_kv, A_w_q, A_w_uk, A_w_uv, A_w_o)
    g = _silu(_B_ref(xn, B_w1, B_b1, B_w2, B_b2))
    return x + s * g
```

```python
import sys
NAME = "recurrent_scan__compressed_kv_cla__dense_activation_gelu__decode"
TS = int(sys.argv[2]) if len(sys.argv) > 2 else -1
out = []
def E(s): out.append("    " + s)
def L(s): out.append(s + ":")
def C(s): out.append("    ; " + s)
def vr(a, n): return f"v[{a}:{a+n-1}]"

WS_EPOCH = 0; WS_FLAGS = 4096; WS_Q2 = 32768; WS_ST3 = 98304; WS_X3 = 0x20000; WS_X4 = 0x220000; WS_XF = 0x320000
OOB = 0xF0000000
CK = 0; CKP = 1040; R2 = 133120; RED = 149504; QS = RED; QSP = 528
XN = 158208; QB = 160256; MX = 160768; LS = 161024; PS = 161280; PSP = 272; LDS_SIZE = 163840
FR = XN; HB = QB
RD = 0; CT = 4096; EO = 8192; FO = 12288; FIN = 16384
sX, sCK, sWQ, sWUK, sWUV, sWO, sW1, sW2, sWS, sOUT, sB1, sB2 = [f"s[{8+4*i}:{11+4*i}]" for i in range(12)]
XCD, HG, CS, H, BA, KS, WV, TAG = "s56", "s57", "s58", "s59", "s60", "s61", "s62", "s63"
TID, LANE, N, G = "v0", "v1", "v2", "v3"
SEL = 4
XA = 32; WQ = 96; SF = 96; PVF = 32; WO = 160; W1R = 224; W2R = 240
SPIN = 200000
tsn = [0]
def ts():
    if TS < 0: return
    i = tsn[0]; tsn[0] += 1
    E(f"s_memrealtime s[{92}:{93}]")
    E("s_waitcnt lgkmcnt(0)")
    E(f"s_mov_b32 s{72+i}, s92")

def mfma(d, a, b, c=None):
    cc = vr(d, 4) if c is None else c
    E(f"v_mfma_f32_16x16x32_bf16 {vr(d,4)}, {vr(a,4)}, {vr(b,4)}, {cc}")

def xsum(v, t, op="add"):
    E(f"v_mov_b32 {t}, {v}")
    E("s_nop 1")
    E(f"v_permlane16_swap_b32 {v}, {t}")
    E("s_nop 1")
    E(f"v_{op}_f32 {v}, {v}, {t}")
    E(f"v_mov_b32 {t}, {v}")
    E("s_nop 1")
    E(f"v_permlane32_swap_b32 {v}, {t}")
    E("s_nop 1")
    E(f"v_{op}_f32 {v}, {v}, {t}")

def rowsum(vs, rots=(8, 4, 2, 1), op="add"):
    for r in rots:
        E("s_nop 1")
        for v in vs:
            E(f"v_{op}_f32_dpp {v}, {v}, {v} row_ror:{r} row_mask:0xf bank_mask:0xf")

def selectors():
    E("v_and_b32 v12, 7, v2")
    E("v_lshrrev_b32 v13, 1, v12")
    E("v_and_b32 v14, 1, v12")
    E("s_mov_b32 s64, 0x0c0c0100"); E("s_mov_b32 s65, 0x01000c0c")
    E("s_mov_b32 s66, 0x0c0c0302"); E("s_mov_b32 s67, 0x03020c0c")
    E("v_cmp_eq_u32 vcc, 1, v14")
    E("v_mov_b32 v15, s64"); E("v_mov_b32 v16, s65"); E("v_mov_b32 v17, s66"); E("v_mov_b32 v18, s67")
    E("v_cndmask_b32 v15, v15, v16, vcc")
    E("v_cndmask_b32 v17, v17, v18, vcc")
    E("v_mov_b32 v16, 0x0c0c0c0c")
    for q in range(4):
        E(f"v_cmp_eq_u32 vcc, {q}, v13")
        E(f"v_cndmask_b32 v{SEL+q}, v16, v15, vcc")
        E(f"v_cndmask_b32 v{SEL+4+q}, v16, v17, vcc")

def build_diag(dst, src, nt):
    for t in range(nt):
        for q in range(4):
            E(f"v_perm_b32 v{dst+4*t+q}, v{src+t//2}, v{src+t//2}, v{SEL+(t&1)*4+q}")

lbl = [0]
def poll(loads, regs, tmp):
    k = lbl[0]; lbl[0] += 1
    E("s_mov_b32 s70, 0")
    L(f"POLL{k}")
    for ld in loads: E(ld)
    E("s_waitcnt vmcnt(0)")
    E(f"v_max_u32 {tmp}, v{regs[0]}, v{regs[1]}")
    i = 2
    while i < len(regs):
        if i + 1 < len(regs):
            E(f"v_max3_u32 {tmp}, {tmp}, v{regs[i]}, v{regs[i+1]}"); i += 2
        else:
            E(f"v_max_u32 {tmp}, {tmp}, v{regs[i]}"); i += 1
    E(f"v_cmp_eq_u32 vcc, -1, {tmp}")
    E("s_add_u32 s70, s70, 1")
    E(f"s_cbranch_vccz POLLD{k}")
    E(f"s_cmp_lt_u32 s70, {SPIN}")
    E(f"s_cbranch_scc1 POLL{k}")
    L(f"POLLD{k}")

def rnd_bf16_pair(a, b, t):
    E(f"v_cvt_pk_bf16_f32 {t}, {a}, {b}")
    E(f"v_lshlrev_b32 {a}, 16, {t}")
    E(f"v_and_b32 {b}, 0xffff0000, {t}")

E("s_cmp_ge_u32 s2, 256")
E("s_cbranch_scc1 END")
E("s_load_dwordx16 s[64:79], s[0:1], 0")
E("s_load_dwordx8 s[80:87], s[0:1], 64")
E("s_load_dwordx4 s[88:91], s[0:1], 96")
E("v_and_b32 v1, 63, v0")
E("v_lshrrev_b32 v12, 6, v0")
E("v_and_b32 v2, 15, v1")
E("v_lshrrev_b32 v3, 4, v1")
E(f"v_readfirstlane_b32 {WV}, v12")
E(f"s_and_b32 {XCD}, s2, 7")
E("s_lshr_b32 s3, s2, 3")
E(f"s_lshr_b32 {HG}, s3, 3")
E(f"s_and_b32 {CS}, s3, 7")
E(f"s_lshl_b32 {H}, {HG}, 3")
E(f"s_add_u32 {H}, {H}, {XCD}")
E(f"s_lshl_b32 s3, {XCD}, 3")
E(f"s_add_u32 s3, s3, {CS}")
E(f"s_lshr_b32 {BA}, s3, 5")
E(f"s_and_b32 {KS}, s3, 31")
E("s_waitcnt lgkmcnt(0)")
srd_src = [(8, 64, 2048), (12, 66, 8388608), (16, 68, 4194304), (20, 70, 4194304), (24, 72, 4194304), (28, 74, 4194304),
           (32, 78, 512*1376*2), (36, 82, 1376*512*2), (40, 90, 0x10000000), (44, 86, 2048), (48, 80, 2752), (52, 84, 1024)]
for d, s, nb in srd_src:
    E(f"s_mov_b32 s{d}, s{s}"); E(f"s_mov_b32 s{d+1}, s{s+1}"); E(f"s_mov_b32 s{d+2}, {nb}"); E(f"s_mov_b32 s{d+3}, 0x00020000")
if TS >= 0:
    E("s_mov_b32 s96, s88"); E("s_mov_b32 s97, s89"); E("s_mov_b32 s98, 256"); E("s_mov_b32 s99, 0x00020000")
ts()
A_X3, A_X4, A_Q2, A_ST, A_XF = "v20", "v21", "v22", "v23", "v24"
VOOB = "v25"
E(f"v_mov_b32 {VOOB}, 0x{OOB:x}")
C("X3: ((h*8+w)*64 + b*32+ks)*128 + g*32, h = hg*8+n, lanes n<8")
E(f"s_lshl_b32 s64, {HG}, 6"); E(f"s_add_u32 s64, s64, {WV}"); E("s_lshl_b32 s64, s64, 6")
E(f"s_lshl_b32 s65, {BA}, 5"); E(f"s_add_u32 s65, s65, {KS}")
E("s_add_u32 s64, s64, s65"); E("s_lshl_b32 s64, s64, 7"); E(f"s_add_u32 s64, s64, {WS_X3}")
E(f"v_lshlrev_b32 v12, 16, {N}")
E(f"v_lshl_add_u32 v12, {G}, 5, v12")
E(f"v_add_u32 {A_X3}, s64, v12")
E(f"v_cmp_gt_u32 vcc, 8, {N}")
E(f"v_cndmask_b32 {A_X3}, {VOOB}, {A_X3}, vcc")
C("ST3: (h*64 + pair)*8, wave 0 lanes<8")
E(f"s_lshl_b32 s64, {HG}, 9"); E("s_add_u32 s64, s64, s65"); E("s_lshl_b32 s64, s64, 3"); E(f"s_add_u32 s64, s64, {WS_ST3}")
E(f"v_lshlrev_b32 v12, 9, {LANE}")
E(f"v_add_u32 {A_ST}, s64, v12")
E(f"v_cmp_gt_u32 vcc, 8, {TID}")
E(f"v_cndmask_b32 {A_ST}, {VOOB}, {A_ST}, vcc")
C("X4: (r*256+p)*64 + ((n&1)*8+(g&1)*4)*4 ; r = (g>>1)*32 + w*8 + (n>>1) ; waves 0-3")
E(f"v_lshrrev_b32 v12, 1, {G}"); E("v_lshlrev_b32 v12, 5, v12")
E(f"v_lshrrev_b32 v13, 1, {N}"); E("v_add_u32 v12, v12, v13")
E(f"s_lshl_b32 s64, {WV}, 3"); E("v_add_u32 v12, s64, v12")
E(f"v_and_b32 v13, 1, {N}"); E("v_lshlrev_b32 v13, 5, v13")
E(f"v_and_b32 v14, 1, {G}"); E("v_lshl_add_u32 v13, v14, 4, v13")
E("v_lshl_add_u32 v14, v12, 14, v13")
E("s_lshl_b32 s64, s2, 6"); E(f"s_add_u32 s64, s64, {WS_X4}")
E(f"v_add_u32 {A_X4}, s64, v14")
E("v_lshl_add_u32 v14, v12, 12, v13")
E("s_lshl_b32 s64, s2, 6"); E(f"s_add_u32 s64, s64, {WS_XF}")
E(f"v_add_u32 {A_XF}, s64, v14")
E(f"v_cmp_gt_u32 vcc, 256, {TID}")
E(f"v_cndmask_b32 {A_X4}, {VOOB}, {A_X4}, vcc")
E("s_cmp_lt_u32 s2, 43"); E("s_cselect_b64 s[64:65], vcc, 0")
E(f"v_cndmask_b32 {A_XF}, {VOOB}, {A_XF}, s[64:65]")
C("Q2: b*32768 + h*1024 + (cs*64 + w*16 + g*4)*2 ; lanes n<2, waves 0-3")
E(f"s_lshl_b32 s64, {H}, 10"); E(f"s_lshl_b32 s65, {CS}, 7"); E("s_add_u32 s64, s64, s65")
E(f"s_lshl_b32 s65, {WV}, 5"); E("s_add_u32 s64, s64, s65"); E(f"s_add_u32 s64, s64, {WS_Q2}")
E(f"v_lshlrev_b32 v12, 15, {N}"); E(f"v_lshl_add_u32 v12, {G}, 3, v12")
E(f"v_add_u32 {A_Q2}, s64, v12")
E(f"v_cmp_gt_u32 s[64:65], 2, {N}")
E("s_and_b64 vcc, vcc, s[64:65]")
E(f"v_cndmask_b32 {A_Q2}, {VOOB}, {A_Q2}, vcc")
C("clears")
for i in range(4): E(f"v_mov_b32 v{12+i}, -1")
E(f"buffer_store_dwordx4 v[12:15], {A_X3}, {sWS}, 0 offen sc1")
E(f"buffer_store_dwordx4 v[12:15], {A_X3}, {sWS}, 0 offen offset:16 sc1")
E(f"buffer_store_dwordx4 v[12:15], {A_X4}, {sWS}, 0 offen sc1")
E(f"buffer_store_dwordx2 v[12:13], {A_Q2}, {sWS}, 0 offen sc1")
E(f"buffer_store_dwordx2 v[12:13], {A_ST}, {sWS}, 0 offen sc1")
E(f"buffer_store_dwordx4 v[12:15], {A_XF}, {sWS}, 0 offen sc1")
C("epoch, x")
E("v_mov_b32 v16, 0")
E(f"v_lshlrev_b32 v17, 4, {LANE}")
E(f"buffer_load_dword v26, v16, {sWS}, 0 offen sc1")
E(f"buffer_load_dwordx4 v[32:35], v17, {sX}, 0 offen")
E(f"buffer_load_dwordx4 v[36:39], v17, {sX}, 0 offen offset:1024")
C("Wq loads: m = 64w + g*16 + t")
E(f"v_lshlrev_b32 v18, 17, {G}"); E(f"v_lshl_add_u32 v18, {N}, 4, v18")
E(f"s_lshl_b32 s64, {WV}, 19"); E(f"s_lshl_b32 s65, {H}, 8"); E("s_add_u32 s64, s64, s65")
for t in range(16):
    E(f"buffer_load_dwordx4 {vr(WQ+4*t,4)}, v18, {sWQ}, s64 offen nt")
    if t < 15: E("s_add_u32 s64, s64, 8192")
C("Wuk DMA: instr idx = 2w+u ; row = 4 idx + g ; chunk = n ^ (row&15)")
for u in range(2):
    E(f"s_lshl_b32 s64, {WV}, 3");
    if u: E("s_add_u32 s64, s64, 4")
    E(f"v_add_u32 v12, s64, {G}")
    E("v_and_b32 v13, 15, v12"); E(f"v_xor_b32 v13, v13, {N}")
    E("v_lshlrev_b32 v12, 13, v12"); E("v_lshl_add_u32 v12, v13, 4, v12")
    E(f"s_lshl_b32 s65, {CS}, 19"); E(f"s_lshl_b32 s66, {H}, 8"); E("s_add_u32 s65, s65, s66")
    E("s_lshl_b32 s64, s64, 8"); E(f"s_add_u32 s64, s64, {R2}")
    E("s_mov_b32 m0, s64"); E("s_nop 0")
    E(f"buffer_load_dwordx4 v12, {sWUK}, s65 offen nt lds")
selectors()
E("s_waitcnt vmcnt(18)")
ts()
E(f"v_readfirstlane_b32 s64, v26")
C("unpack x: b0 -> v40..47, b1 -> v48..55")
for b in range(2):
    for k in range(4):
        E(f"v_lshlrev_b32 v{40+8*b+2*k}, 16, v{32+4*b+k}")
        E(f"v_and_b32 v{41+8*b+2*k}, 0xffff0000, v{32+4*b+k}")
E("s_mul_i32 s64, s64, 1664525"); E(f"s_add_u32 {TAG}, s64, 1013904223")
for b in range(2):
    E(f"v_add_f32 v{56+b}, v{40+8*b}, v{41+8*b}")
    for k in range(2, 8): E(f"v_add_f32 v{56+b}, v{56+b}, v{40+8*b+k}")
rowsum(["v56", "v57"]); xsum("v56", "v58"); xsum("v57", "v59")
E("v_mul_f32 v56, 0x3b000000, v56"); E("v_mul_f32 v57, 0x3b000000, v57")
for b in range(2):
    E(f"v_sub_f32 v60, v{40+8*b}, v{56+b}"); E(f"v_mul_f32 v{58+b}, v60, v60")
    for k in range(1, 8):
        E(f"v_sub_f32 v60, v{40+8*b+k}, v{56+b}"); E(f"v_fmac_f32 v{58+b}, v60, v60")
rowsum(["v58", "v59"]); xsum("v58", "v60"); xsum("v59", "v61")
E("v_mul_f32 v58, 0x3b000000, v58"); E("v_mul_f32 v59, 0x3b000000, v59")
rnd_bf16_pair("v56", "v57", "v60")
rnd_bf16_pair("v58", "v59", "v60")
E("v_add_f32 v58, 0x3727c5ac, v58"); E("v_add_f32 v59, 0x3727c5ac, v59")
rnd_bf16_pair("v58", "v59", "v60")
E("v_sqrt_f32 v58, v58"); E("v_sqrt_f32 v59, v59"); E("s_nop 0")
rnd_bf16_pair("v58", "v59", "v60")
E("v_rcp_f32 v62, v58"); E("v_rcp_f32 v63, v59"); E("s_nop 0")
for b in range(2):
    for k in range(0, 8, 2):
        a0, a1 = f"v{40+8*b+k}", f"v{41+8*b+k}"
        E(f"v_sub_f32 {a0}, {a0}, v{56+b}"); E(f"v_sub_f32 {a1}, {a1}, v{56+b}")
        rnd_bf16_pair(a0, a1, "v60")
        for a in (a0, a1):
            E(f"v_mul_f32 v60, {a}, v{62+b}")
            E(f"v_fma_f32 v61, -v60, v{58+b}, {a}")
            E(f"v_fma_f32 {a}, v61, v{62+b}, v60")
        E(f"v_cvt_pk_bf16_f32 v{32+4*b+k//2}, {a0}, {a1}")
E(f"v_lshlrev_b32 v17, 4, {LANE}"); E(f"v_add_u32 v17, {XN}, v17")
E("ds_write_b128 v17, v[32:35]")
E("ds_write_b128 v17, v[36:39] offset:1024")
C("read 16 xn values: b = n>>3, m = 64w + g*16")
E(f"v_lshrrev_b32 v12, 3, {N}"); E("v_lshlrev_b32 v12, 10, v12"); E(f"v_lshl_add_u32 v12, {G}, 5, v12")
E(f"s_lshl_b32 s64, {WV}, 7"); E(f"s_add_u32 s64, s64, {XN}"); E("v_add_u32 v12, s64, v12")
E("s_waitcnt lgkmcnt(0)")
E("ds_read_b128 v[12:15], v12 offset:0") if False else None
E("ds_read_b128 v[224:227], v12")
E("ds_read_b128 v[228:231], v12 offset:16")
E("s_barrier")
C("flag store (tid 0)")
E("s_lshl_b32 s64, s2, 6"); E(f"s_add_u32 s64, s64, {WS_FLAGS}")
E("v_mov_b32 v12, s64"); E(f"v_mov_b32 v13, {TAG}")
E(f"v_cmp_eq_u32 vcc, 0, {TID}")
E(f"v_cndmask_b32 v12, {VOOB}, v12, vcc")
E(f"buffer_store_dword v13, v12, {sWS}, 0 offen sc1")
C("c_kv DMA: rows w*16+i")
E(f"v_lshlrev_b32 v14, 4, {LANE}")
E(f"s_lshl_b32 s64, {BA}, 22"); E(f"s_lshl_b32 s65, {KS}, 17"); E("s_add_u32 s64, s64, s65")
E(f"s_lshl_b32 s65, {WV}, 14"); E("s_add_u32 s64, s64, s65")
E(f"s_mul_i32 s65, {WV}, {16*CKP}")
for i in range(16):
    E("s_mov_b32 m0, s65"); E("s_nop 0")
    E(f"buffer_load_dwordx4 v14, {sCK}, s64 offen nt lds")
    if i < 15: E("s_add_u32 s64, s64, 1024"); E(f"s_add_u32 s65, s65, {CKP}")
E("s_waitcnt lgkmcnt(0)")
build_diag(XA, 224, 16)
C("W1 loads: row d = 64w + g*16 + 4u + rs ; cols fs*32 + fc*8")
E(f"v_lshrrev_b32 v12, 2, {N}"); E(f"v_lshl_add_u32 v12, {G}, 4, v12")
E(f"s_lshl_b32 s64, {WV}, 6"); E("v_add_u32 v12, s64, v12")
E("s_movk_i32 s64, 2752"); E("v_mul_lo_u32 v12, v12, s64")
E(f"v_and_b32 v13, 3, {N}"); E("v_lshl_add_u32 v12, v13, 4, v12")
E("s_cmp_lt_u32 s2, 43"); E("s_cselect_b64 vcc, -1, 0")
E(f"v_cndmask_b32 v12, {VOOB}, v12, vcc")
E("s_lshl_b32 s64, s2, 6")
for u in range(4):
    E(f"buffer_load_dwordx4 {vr(W1R+4*u,4)}, v12, {sW1}, s64 offen nt")
    if u < 3: E(f"s_add_u32 s64, s64, {4*2752}")
C("Wo loads: d = dh*64 + g*16 + t ; m = mq*128 + n*8")
E(f"v_lshlrev_b32 v13, 14, {G}"); E(f"v_lshl_add_u32 v13, {N}, 4, v13")
E(f"s_lshl_b32 s64, {H}, 17"); E(f"s_lshr_b32 s65, {WV}, 2"); E("s_lshl_b32 s65, s65, 16"); E("s_add_u32 s64, s64, s65")
E(f"s_and_b32 s65, {WV}, 3"); E("s_lshl_b32 s65, s65, 8"); E("s_add_u32 s64, s64, s65")
for t in range(16):
    E(f"buffer_load_dwordx4 {vr(WO+4*t,4)}, v13, {sWO}, s64 offen offset:{(t&3)*1024} nt")
    if (t & 3) == 3 and t < 15: E("s_add_u32 s64, s64, 4096")
C("W2 loads: f = fs*32 + fh*16 + g*4 + t ; m = mq*128 + n*8")
E(f"v_lshlrev_b32 v13, 12, {G}"); E(f"v_lshl_add_u32 v13, {N}, 4, v13")
E(f"v_cndmask_b32 v13, {VOOB}, v13, vcc")
E("s_lshl_b32 s64, s2, 15"); E(f"s_lshr_b32 s65, {WV}, 2"); E("s_lshl_b32 s65, s65, 14"); E("s_add_u32 s64, s64, s65")
E(f"s_and_b32 s65, {WV}, 3"); E("s_lshl_b32 s65, s65, 8"); E("s_add_u32 s64, s64, s65")
E("s_cmp_lt_u32 s2, 43"); E("s_cselect_b32 s64, s64, 0")
W2R_ = W2R if TS < 0 else W2R
for t in range(4):
    E(f"buffer_load_dwordx4 {vr(W2R+4*t,4)}, v13, {sW2}, s64 offen offset:{t*1024} nt")
AFTER_WQ = 2 + 1 + 16 + 4 + 16 + 4
for t in range(16):
    E(f"s_waitcnt vmcnt({min(63, AFTER_WQ + 15 - t)})")
    acc = 12 + 4 * (t & 1)
    mfma(acc, XA + 4*t, WQ + 4*t, "0" if t < 2 else None)
ts()
E(f"v_lshrrev_b32 v26, 1, {G}"); E("v_lshlrev_b32 v26, 9, v26"); E(f"v_lshl_add_u32 v26, {N}, 5, v26")
E(f"v_and_b32 v27, 1, {G}"); E("v_lshl_add_u32 v26, v27, 4, v26")
E(f"s_lshl_b32 s64, {WV}, 10"); E(f"s_add_u32 s64, s64, {RED}"); E("v_add_u32 v26, s64, v26")
E("s_nop 4")
for r in range(4): E(f"v_add_f32 v{12+r}, v{12+r}, v{16+r}")
E("ds_write_b128 v26, v[12:15]")
E(f"s_waitcnt vmcnt({AFTER_WQ-2}) lgkmcnt(0)")
E("s_barrier")
E(f"s_cmp_ge_u32 {WV}, 4")
E("s_cbranch_scc1 SKIPB")
C("phase B (waves 0-3)")
E(f"v_lshlrev_b32 v26, 4, {LANE}"); E(f"v_add_u32 v26, {RED}, v26")
for w in range(8): E(f"ds_read_b128 {vr(WQ+4*w,4)}, v26 offset:{w*1024}")
E(f"s_lshl_b32 s64, {WV}, 12"); E(f"s_add_u32 s64, s64, {R2}")
E(f"v_lshlrev_b32 v27, 8, {N}"); E("v_add_u32 v27, s64, v27")
for s in range(4):
    E(f"v_add_u32 v28, {4*s}, {G}"); E(f"v_xor_b32 v28, v28, {N}"); E("v_lshl_add_u32 v28, v28, 4, v27")
    E(f"ds_read_b128 {vr(WQ+32+4*s,4)}, v28")
E("s_waitcnt lgkmcnt(4)")
for st in (4, 2, 1):
    for w in range(st):
        for r in range(4): E(f"v_add_f32 v{WQ+4*w+r}, v{WQ+4*w+r}, v{WQ+4*(w+st)+r}")
E(f"v_cvt_pk_bf16_f32 v12, v{WQ}, v{WQ+1}"); E(f"v_cvt_pk_bf16_f32 v13, v{WQ+2}, v{WQ+3}")
E(f"v_lshlrev_b32 v26, 3, {LANE}"); E(f"v_add_u32 v26, {QB}, v26")
E("ds_write_b64 v26, v[12:13]")
E(f"v_and_b32 v26, 1, {N}"); E("v_lshlrev_b32 v26, 8, v26"); E(f"v_lshl_add_u32 v26, {G}, 4, v26"); E(f"v_add_u32 v26, {QB}, v26")
E("s_waitcnt lgkmcnt(0)")
for s in range(4): E(f"ds_read_b128 {vr(WQ+4*s,4)}, v26 offset:{s*64}")
for s in range(4):
    E(f"s_waitcnt lgkmcnt({3-s})")
    mfma(12 + 4*(s & 1), WQ+32+4*s, WQ+4*s, "0" if s < 2 else None)
E("s_nop 7")
for r in range(4): E(f"v_add_f32 v{12+r}, v{12+r}, v{16+r}")
E("v_cvt_pk_bf16_f32 v12, v12, v13"); E("v_cvt_pk_bf16_f32 v13, v14, v15")
L("SKIPB")
E(f"buffer_store_dwordx2 v[12:13], {A_Q2}, {sWS}, 0 offen sc1")
ts()
E("s_cmp_ge_u32 s2, 43")
E("s_cbranch_scc1 SKIPF1")
E(f"s_waitcnt vmcnt({16+4+1})")
for u in range(4):
    for rs in range(4):
        mfma(WQ + 4*rs, XA + 4*(4*u+rs), W1R + 4*u, "0" if u == 0 else None)
E(f"v_lshrrev_b32 v26, 2, {N}")
E("s_nop 6")
for rs in range(1, 4):
    E(f"v_cmp_eq_u32 vcc, {rs}, v26")
    for r in range(4): E(f"v_cndmask_b32 v{WQ+r}, v{WQ+r}, v{WQ+4*rs+r}, vcc")
rowsum([f"v{WQ+r}" for r in range(4)], rots=(8, 4))
C("FR[w][b][f] : b=g>>1, f = fc*8 + (g&1)*4 + r ; lanes n<4 write (others same values, same addr)")
E(f"v_lshrrev_b32 v26, 1, {G}"); E("v_lshlrev_b32 v26, 7, v26"); E(f"v_and_b32 v27, 3, {N}"); E("v_lshl_add_u32 v26, v27, 5, v26")
E(f"v_and_b32 v27, 1, {G}"); E("v_lshl_add_u32 v26, v27, 4, v26")
E(f"s_lshl_b32 s64, {WV}, 8"); E(f"s_add_u32 s64, s64, {FR}"); E("v_add_u32 v26, s64, v26")
E(f"ds_write_b128 v26, {vr(WQ,4)}")
L("SKIPF1")
C("flags: wave w checks flags 32w..32w+31 (lanes<32)")
E(f"s_lshl_b32 s64, {WV}, 11"); E(f"s_add_u32 s64, s64, {WS_FLAGS}")
E(f"v_and_b32 v26, 31, {LANE}"); E("v_lshlrev_b32 v26, 6, v26"); E("v_add_u32 v26, s64, v26")
E("s_mov_b32 s70, 0")
L("FLG")
E(f"buffer_load_dword v27, v26, {sWS}, 0 offen sc1")
E("s_waitcnt vmcnt(0)")
E(f"v_cmp_ne_u32 vcc, {TAG}, v27")
E("s_add_u32 s70, s70, 1")
E("s_cbranch_vccz FLGD")
E(f"s_cmp_lt_u32 s70, {SPIN}")
E("s_cbranch_scc1 FLG")
L("FLGD")
ts()
C("S frags (own rows)")
E(f"s_mul_i32 s64, {WV}, {16*CKP}")
E(f"v_mul_u32_u24 v26, {CKP}, {N}"); E(f"v_lshl_add_u32 v26, {G}, 4, v26"); E("v_add_u32 v26, s64, v26")
for u in range(16): E(f"ds_read_b128 {vr(SF+4*u,4)}, v26 offset:{u*64}")
E("s_waitcnt lgkmcnt(0)")
E("s_barrier")
C("Wuv DMA (flat): idx = 2w+u ; row = 4 idx + g")
for u in range(2):
    E(f"s_lshl_b32 s64, {WV}, 3")
    if u: E("s_add_u32 s64, s64, 4")
    E(f"v_add_u32 v12, s64, {G}")
    E("v_lshlrev_b32 v12, 13, v12"); E(f"v_lshl_add_u32 v12, {N}, 4, v12")
    E(f"s_lshl_b32 s65, {CS}, 19"); E(f"s_lshl_b32 s66, {H}, 8"); E("s_add_u32 s65, s65, s66")
    E("s_lshl_b32 s64, s64, 8"); E(f"s_add_u32 s64, s64, {R2}")
    E("s_mov_b32 m0, s64"); E("s_nop 0")
    E(f"buffer_load_dwordx4 v12, {sWUV}, s65 offen nt lds")
C("PV frags: addr = (g*8 + (n>>2))*CKP + (n&3)*32 + w*128 ; imm (s*32+hh*4)*CKP + nt*8")
E(f"v_lshrrev_b32 v26, 2, {N}"); E(f"v_lshl_add_u32 v26, {G}, 3, v26"); E(f"v_mul_u32_u24 v26, {CKP}, v26")
E(f"v_and_b32 v27, 3, {N}"); E("v_lshl_add_u32 v26, v27, 5, v26")
E(f"s_lshl_b32 s64, {WV}, 7"); E("v_add_u32 v26, s64, v26")
E(f"v_add_u32 v27, {64*CKP}, v26")
for nt in range(4):
    for s in range(4):
        for hh in range(2):
            base = "v26" if s < 2 else "v27"
            off = ((s & 1)*32 + hh*4)*CKP + nt*8
            E(f"ds_read_b64_tr_b16 {vr(PVF + (nt*4+s)*4 + hh*2, 2)}, {base} offset:{off}")
        if (nt*4+s) % 4 == 3: E("s_waitcnt lgkmcnt(4)")
C("poll Q: wave w -> head hg*8+w, lane -> 16B")
E(f"s_lshl_b32 s64, {BA}, 15"); E(f"s_lshl_b32 s65, {HG}, 13"); E("s_add_u32 s64, s64, s65")
E(f"s_lshl_b32 s65, {WV}, 10"); E("s_add_u32 s64, s64, s65"); E(f"s_add_u32 s64, s64, {WS_Q2}")
E(f"v_lshlrev_b32 v26, 4, {LANE}"); E("v_add_u32 v26, s64, v26")
E(f"v_lshrrev_b32 v27, 5, {LANE}"); E(f"v_lshlrev_b32 v27, 3, v27"); E(f"v_add_u32 v27, {WV}, v27"); E(f"v_mul_u32_u24 v27, {QSP}, v27")
E(f"v_and_b32 v28, 31, {LANE}"); E("v_lshl_add_u32 v27, v28, 4, v27"); E(f"v_add_u32 v27, {QS}, v27")
E(f"v_mul_u32_u24 v28, {QSP}, {N}"); E(f"v_lshl_add_u32 v28, {G}, 4, v28"); E(f"v_add_u32 v28, {QS}, v28")
poll([f"buffer_load_dwordx4 v[12:15], v26, {sWS}, 0 offen sc1"], [12, 13, 14, 15], "v16")
E("ds_write_b128 v27, v[12:15]")
E("s_waitcnt lgkmcnt(0)")
E("s_barrier")
ts()
QF = [224, 228, 232, 236, 12, 16, 26 + 0, 0]
QFR = [224, 228, 232, 236, 12, 16]
C("S = Q.C^T")
for t in range(6): E(f"ds_read_b128 {vr(QFR[t],4)}, v28 offset:{t*64}")
for t in range(8):
    if t < 6: E(f"s_waitcnt lgkmcnt({5-t if t < 2 else min(5-t+2, 5 - t + 2)})") if False else None
    if t == 0: E("s_waitcnt lgkmcnt(5)")
    elif t == 1: E("s_waitcnt lgkmcnt(4)")
    elif t < 6: E(f"s_waitcnt lgkmcnt({7-t})")
    else: E(f"s_waitcnt lgkmcnt({7-t})")
    q = QFR[t % 6]
    mfma(4, SF + 4*t, q, "0" if t == 0 else None)
    mfma(8, SF + 4*(8+t), q, "0" if t == 0 else None)
    if t < 2:
        E("s_nop 3")
        E(f"ds_read_b128 {vr(QFR[t],4)}, v28 offset:{(6+t)*64}")
E("s_nop 7")
for r in range(4):
    E(f"v_add_f32_dpp v{4+r}, v{8+r}, v{4+r} row_ror:8 row_mask:0xf bank_mask:0xf")
C("rounding mimic")
rnd_bf16_pair("v4", "v5", "v12"); rnd_bf16_pair("v6", "v7", "v13")
for r in range(4): E(f"v_mul_f32 v{4+r}, 0x3db504f3, v{4+r}")
rnd_bf16_pair("v4", "v5", "v12"); rnd_bf16_pair("v6", "v7", "v13")
E("v_max3_f32 v8, v4, v5, v6"); E("v_max_f32 v8, v8, v7")
xsum("v8", "v9", "max")
C("MX[head][w]")
E(f"v_and_b32 v12, 7, {N}"); E(f"v_lshlrev_b32 v12, 5, v12"); E(f"v_add_u32 v13, {MX}, v12")
E(f"s_lshl_b32 s64, {WV}, 2"); E("v_add_u32 v14, s64, v13")
E(f"v_cmp_gt_u32 vcc, 8, {LANE}")
E("s_and_saveexec_b64 s[66:67], vcc")
E("ds_write_b32 v14, v8")
E("s_mov_b64 exec, s[66:67]")
E("s_waitcnt lgkmcnt(0)")
E("s_barrier")
E("ds_read_b128 v[224:227], v13"); E("ds_read_b128 v[228:231], v13 offset:16")
E("s_waitcnt lgkmcnt(0)")
E("v_max3_f32 v8, v224, v225, v226"); E("v_max3_f32 v8, v8, v227, v228"); E("v_max3_f32 v8, v8, v229, v230"); E("v_max_f32 v8, v8, v231")
for r in range(4):
    E(f"v_sub_f32 v{4+r}, v{4+r}, v8"); E(f"v_mul_f32 v{4+r}, 0x3fb8aa3b, v{4+r}"); E(f"v_exp_f32 v{4+r}, v{4+r}")
E("s_nop 0")
E("v_add_f32 v9, v4, v5"); E("v_add_f32 v10, v6, v7"); E("v_add_f32 v9, v9, v10")
E("v_cvt_pk_bf16_f32 v4, v4, v5"); E("v_cvt_pk_bf16_f32 v5, v6, v7")
C("PS[head][key = w*16 + g*4 + r]")
E(f"v_and_b32 v12, 7, {N}"); E(f"v_mul_u32_u24 v15, {PSP}, v12"); E(f"v_add_u32 v15, {PS}, v15")
E(f"v_lshl_add_u32 v16, {G}, 3, v15"); E(f"s_lshl_b32 s64, {WV}, 5"); E("v_add_u32 v16, s64, v16")
E(f"v_cmp_gt_u32 vcc, 8, {N}")
E("s_and_saveexec_b64 s[66:67], vcc")
E("ds_write_b64 v16, v[4:5]")
E("s_mov_b64 exec, s[66:67]")
xsum("v9", "v10")
E(f"v_add_u32 v14, {LS-MX}, v14")
E(f"v_cmp_gt_u32 vcc, 8, {LANE}")
E("s_and_saveexec_b64 s[66:67], vcc")
E("ds_write_b32 v14, v9")
E("s_mov_b64 exec, s[66:67]")
E(f"v_lshl_add_u32 v15, {G}, 4, v15")
E("s_waitcnt lgkmcnt(0)")
E("s_barrier")
for s in range(4): E(f"ds_read_b128 {vr(224+4*s,4)}, v15 offset:{s*64}")
E(f"ds_read_b128 v[28:31], v13 offset:{LS-MX}"); E(f"ds_read_b128 v[16:19], v13 offset:{LS-MX+16}")
for s in range(4):
    E(f"s_waitcnt lgkmcnt({5-s})")
    for nt in range(4):
        mfma(SF + 4*nt, PVF + (nt*4+s)*4, 224 + 4*s, "0" if s == 0 else None)
E("s_waitcnt lgkmcnt(0)")
E("v_add_f32 v12, v28, v29"); E("v_add_f32 v14, v30, v31"); E("v_add_f32 v16, v16, v17"); E("v_add_f32 v18, v18, v19")
E("v_add_f32 v12, v12, v14"); E("v_add_f32 v16, v16, v18"); E("v_add_f32 v9, v12, v16")
E("s_nop 2")
for k in range(8): E(f"v_cvt_pk_bf16_f32 v{12+k}, v{SF+2*k}, v{SF+2*k+1}")
E(f"buffer_store_dwordx4 v[12:15], {A_X3}, {sWS}, 0 offen sc1")
E(f"buffer_store_dwordx4 v[16:19], {A_X3}, {sWS}, 0 offen offset:16 sc1")
E(f"buffer_store_dwordx2 v[8:9], {A_ST}, {sWS}, 0 offen sc1")
ts()
E("s_nop 1")
selectors()
E("s_waitcnt vmcnt(3)")
E("s_barrier")
C("Wuv^T frags: row c = ksx*32 + g*8 + hh*4 + (n>>2) ; col d = nt*16 + (n&3)*4")
E(f"v_lshrrev_b32 v26, 2, {N}"); E(f"v_lshl_add_u32 v26, {G}, 3, v26"); E("v_lshlrev_b32 v26, 8, v26")
E(f"v_and_b32 v27, 3, {N}"); E("v_lshl_add_u32 v26, v27, 3, v26")
E(f"s_and_b32 s64, {WV}, 1"); E("s_lshl_b32 s64, s64, 13"); E(f"s_add_u32 s64, s64, {R2}"); E("v_add_u32 v26, s64, v26")
UV = 32
for nt in range(8):
    for hh in range(2):
        E(f"ds_read_b64_tr_b16 {vr(UV + nt*4 + hh*2, 2)}, v26 offset:{hh*1024 + nt*32}")
    if nt % 4 == 3: E("s_waitcnt lgkmcnt(0)")
E("s_cmp_ge_u32 s2, 43")
E("s_cbranch_scc1 SKIPF2")
C("h: every wave computes redundantly: lane = (b = l>>5, f = l&31)")
E(f"v_lshlrev_b32 v26, 2, {LANE}"); E(f"v_add_u32 v26, {FR}, v26")
for w in range(8): E(f"ds_read_b32 v{64+w}, v26 offset:{w*256}")
E(f"v_and_b32 v27, 31, {LANE}"); E("v_lshlrev_b32 v27, 1, v27"); E("s_lshl_b32 s64, s2, 6")
E(f"buffer_load_ushort v72, v27, {sB1}, s64 offen")
E("s_waitcnt lgkmcnt(0)")
for st in (4, 2, 1):
    for w in range(st): E(f"v_add_f32 v{64+w}, v{64+w}, v{64+w+st}")
E("v_cvt_pk_bf16_f32 v64, v64, v64"); E("v_lshlrev_b32 v64, 16, v64")
E("s_waitcnt vmcnt(0)")
E("v_lshlrev_b32 v72, 16, v72"); E("v_add_f32 v64, v64, v72")
E("v_cvt_pk_bf16_f32 v64, v64, v64"); E("v_lshlrev_b32 v64, 16, v64")
C("gelu tanh: 0.5 x (1+tanh(u)) = x * sigmoid(2u) , u = k0*(x + 0.044715 x^3)")
E("v_mul_f32 v65, v64, v64"); E("v_mul_f32 v65, v65, v64")
E("v_mov_b32 v66, 0x3d372713"); E("v_fma_f32 v65, v65, v66, v64")
E("v_mul_f32 v65, 0xc0135761, v65")
E("v_exp_f32 v65, v65"); E("s_nop 0"); E("v_add_f32 v65, 1.0, v65"); E("v_rcp_f32 v65, v65"); E("s_nop 0")
E("v_mul_f32 v64, v64, v65")
E("v_cvt_pk_bf16_f32 v64, v64, v64")
E(f"v_lshlrev_b32 v26, 1, {LANE}"); E(f"v_add_u32 v26, {HB}, v26")
E("ds_write_b16 v26, v64")
C("read hb[b=n>>3][fh*16 + g*4 .. +4]")
E(f"v_lshrrev_b32 v26, 3, {N}"); E("v_lshlrev_b32 v26, 6, v26"); E(f"v_lshl_add_u32 v26, {G}, 3, v26")
E(f"s_lshr_b32 s64, {WV}, 2"); E("s_lshl_b32 s64, s64, 5"); E(f"s_add_u32 s64, s64, {HB}"); E("v_add_u32 v26, s64, v26")
E("s_waitcnt lgkmcnt(0)")
E("ds_read_b64 v[64:65], v26")
E("s_waitcnt lgkmcnt(0)")
build_diag(68, 64, 4)
E("s_nop 1")
for t in range(4): mfma(84 + 4*(t & 1), 68 + 4*t, W2R + 4*t, "0" if t < 2 else None)
E(f"v_lshlrev_b32 v26, 4, {LANE}"); E(f"s_and_b32 s64, {WV}, 3"); E("s_lshl_b32 s64, s64, 10"); E(f"s_add_u32 s64, s64, {FO}"); E("v_add_u32 v26, s64, v26")
E("s_nop 4")
for r in range(4): E(f"v_add_f32 v{84+r}, v{84+r}, v{88+r}")
E(f"s_cmp_lt_u32 {WV}, 4"); E("s_cbranch_scc1 F2A")
E("ds_write_b128 v26, v[84:87]")
L("F2A")
E("s_waitcnt lgkmcnt(0)")
E("s_barrier")
E("ds_read_b128 v[88:91], v26")
E("s_waitcnt lgkmcnt(0)")
for r in range(4): E(f"v_add_f32 v{84+r}, v{84+r}, v{88+r}")
E(f"buffer_store_dwordx4 v[84:87], {A_XF}, {sWS}, 0 offen sc1")
L("SKIPF2")
C("X3 gather: ((h*8+cs)*64 + mt*16 + n)*128 + ksx*64 + g*16")
E(f"s_lshl_b32 s64, {H}, 3"); E(f"s_add_u32 s64, s64, {CS}"); E("s_lshl_b32 s64, s64, 13")
E(f"s_lshr_b32 s65, {WV}, 1"); E("s_lshl_b32 s65, s65, 11"); E("s_add_u32 s64, s64, s65")
E(f"s_and_b32 s65, {WV}, 1"); E("s_lshl_b32 s65, s65, 6"); E("s_add_u32 s64, s64, s65"); E(f"s_add_u32 s64, s64, {WS_X3}")
E(f"v_lshlrev_b32 v26, 7, {N}"); E(f"v_lshl_add_u32 v26, {G}, 4, v26"); E("v_add_u32 v26, s64, v26")
C("stats: own rows (h*64 + mt*16 + g*4)*8 ; other half (mt^1)")
E(f"s_lshl_b32 s64, {H}, 9"); E(f"s_add_u32 s64, s64, {WS_ST3}")
E(f"s_lshr_b32 s65, {WV}, 1"); E("s_lshl_b32 s66, s65, 7"); E("s_add_u32 s66, s66, s64")
E("s_xor_b32 s65, s65, 1"); E("s_lshl_b32 s65, s65, 7"); E("s_add_u32 s65, s65, s64")
E(f"v_lshlrev_b32 v27, 5, {G}"); E("v_add_u32 v28, s65, v27"); E("v_add_u32 v27, s66, v27")
poll([f"buffer_load_dwordx4 v[64:67], v26, {sWS}, 0 offen sc1",
      f"buffer_load_dwordx4 v[68:71], v27, {sWS}, 0 offen sc1",
      f"buffer_load_dwordx4 v[72:75], v27, {sWS}, 0 offen offset:16 sc1",
      f"buffer_load_dwordx4 v[76:79], v28, {sWS}, 0 offen sc1",
      f"buffer_load_dwordx4 v[80:83], v28, {sWS}, 0 offen offset:16 sc1"], list(range(64, 84)), "v16")
ts()
TD = 96
for nt in range(8): mfma(TD + 4*nt, 64, UV + 4*nt, "0")
C("weights")
E("v_max3_f32 v12, v68, v70, v72"); E("v_max3_f32 v12, v12, v74, v76"); E("v_max3_f32 v12, v12, v78, v80"); E("v_max_f32 v12, v12, v82")
xsum("v12", "v13", "max")
for k in range(8):
    E(f"v_sub_f32 v{68+2*k}, v{68+2*k}, v12"); E(f"v_mul_f32 v{68+2*k}, 0x3fb8aa3b, v{68+2*k}"); E(f"v_exp_f32 v{68+2*k}, v{68+2*k}")
E("s_nop 0")
E("v_mul_f32 v13, v68, v69")
for k in range(1, 8): E(f"v_fmac_f32 v13, v{68+2*k}, v{69+2*k}")
xsum("v13", "v14")
E("v_rcp_f32 v13, v13"); E("s_nop 0")
for k in range(4): E(f"v_mul_f32 v{68+2*k}, v{68+2*k}, v13")
for nt in range(8):
    E(f"v_mul_f32 v{84+nt}, v{TD+4*nt}, v68")
    for r in range(1, 4): E(f"v_fmac_f32 v{84+nt}, v{TD+4*nt+r}, v{68+2*r}")
C("reduce across g: pairs (nt, nt+4) via permlane32 ; then (nt, nt+2) via permlane16")
E("s_nop 1")
for k in range(4): E(f"v_permlane32_swap_b32 v{84+k}, v{88+k}")
E("s_nop 1")
for k in range(4): E(f"v_add_f32 v{84+k}, v{84+k}, v{88+k}")
E("s_nop 1")
for k in range(2): E(f"v_permlane16_swap_b32 v{84+k}, v{86+k}")
E("s_nop 1")
for k in range(2): E(f"v_add_f32 v{84+k}, v{84+k}, v{86+k}")
C("lane (n,g): v84 -> nt = (g>>1)*4 + (g&1)*2 ; v85 -> nt+1 ; d = nt*16+n")
E(f"v_lshrrev_b32 v26, 1, {G}"); E("v_lshlrev_b32 v26, 8, v26"); E(f"v_and_b32 v27, 1, {G}"); E("v_lshl_add_u32 v26, v27, 7, v26")
E(f"v_lshl_add_u32 v26, {N}, 2, v26"); E(f"s_lshl_b32 s64, {WV}, 9"); E(f"s_add_u32 s64, s64, {RD}"); E("v_add_u32 v26, s64, v26")
E("ds_write_b32 v26, v84"); E("ds_write_b32 v26, v85 offset:64")
C("sum: lane (b=l>>5, d4=(l&31)*4): RD[(4b+k)][d]")
E(f"v_lshrrev_b32 v27, 5, {LANE}"); E("v_lshlrev_b32 v27, 11, v27"); E(f"v_and_b32 v28, 31, {LANE}"); E("v_lshl_add_u32 v27, v28, 4, v27")
E(f"v_lshlrev_b32 v28, 3, {LANE}"); E(f"v_add_u32 v28, {CT}, v28")
E(f"v_lshrrev_b32 v29, 3, {N}"); E("v_lshlrev_b32 v29, 8, v29"); E(f"v_lshl_add_u32 v29, {G}, 5, v29")
E(f"s_lshr_b32 s64, {WV}, 2"); E("s_lshl_b32 s64, s64, 7"); E(f"s_add_u32 s64, s64, {CT}"); E("v_add_u32 v29, s64, v29")
E("s_waitcnt lgkmcnt(0)")
E("s_barrier")
for k in range(4): E(f"ds_read_b128 {vr(64+4*k,4)}, v27 offset:{RD + k*512}")
E("s_waitcnt lgkmcnt(0)")
for r in range(4): E(f"v_add_f32 v{64+r}, v{64+r}, v{68+r}"); E(f"v_add_f32 v{72+r}, v{72+r}, v{76+r}")
for r in range(4): E(f"v_add_f32 v{64+r}, v{64+r}, v{72+r}")
E("v_cvt_pk_bf16_f32 v64, v64, v65"); E("v_cvt_pk_bf16_f32 v65, v66, v67")
E("ds_write_b64 v28, v[64:65]")
E("s_waitcnt lgkmcnt(0)")
E("ds_read_b128 v[12:15], v29"); E("ds_read_b128 v[16:19], v29 offset:16")
E("s_waitcnt lgkmcnt(0)")
EA = 32
for t in range(16):
    for q in range(4):
        E(f"v_perm_b32 v{EA+4*t+q}, v{12+t//2}, v{12+t//2}, v{SEL+(t&1)*4+q}")
    if t >= 1:
        tt = t - 1
        mfma(96 + 4*(tt & 1), EA + 4*tt, WO + 4*tt, "0" if tt < 2 else None)
E("s_nop 1")
mfma(96 + 4, EA + 60, WO + 60)
E(f"v_lshlrev_b32 v26, 4, {LANE}"); E(f"s_and_b32 s64, {WV}, 3"); E("s_lshl_b32 s64, s64, 10"); E(f"s_add_u32 s64, s64, {EO}"); E("v_add_u32 v26, s64, v26")
E("s_nop 4")
for r in range(4): E(f"v_add_f32 v{96+r}, v{96+r}, v{100+r}")
E(f"s_cmp_lt_u32 {WV}, 4"); E("s_cbranch_scc1 EA1")
E("ds_write_b128 v26, v[96:99]")
L("EA1")
E("s_waitcnt lgkmcnt(0)")
E("s_barrier")
E("ds_read_b128 v[100:103], v26")
E("s_waitcnt lgkmcnt(0)")
for r in range(4): E(f"v_add_f32 v{96+r}, v{96+r}, v{100+r}")
E(f"buffer_store_dwordx4 v[96:99], {A_X4}, {sWS}, 0 offen sc1")
ts()
E("s_cmp_lt_u32 s2, 192")
E("s_cbranch_scc1 DONE")
E("s_sub_u32 s71, s2, 192")
E("s_lshl_b32 s64, s71, 14"); E(f"s_add_u32 s64, s64, {WS_X4}")
E(f"v_lshlrev_b32 v26, 4, {TID}"); E("v_add_u32 v27, s64, v26"); E("v_add_u32 v28, 8192, v27")
E("s_lshl_b32 s64, s71, 12"); E(f"s_add_u32 s64, s64, {WS_XF}"); E("v_add_u32 v29, s64, v26")
E(f"v_cmp_gt_u32 vcc, 172, {TID}"); E(f"v_cndmask_b32 v29, {VOOB}, v29, vcc")
C("x, b2 for the 16 outputs (lanes 0..15 of wave 0 use them)")
E("s_lshl_b32 s64, s71, 5"); E(f"v_lshlrev_b32 v30, 1, {N}")
E(f"buffer_load_ushort v40, v30, {sX}, s64 offen")
E("s_and_b32 s65, s71, 31"); E("s_lshl_b32 s65, s65, 5")
E(f"buffer_load_ushort v41, v30, {sB2}, s65 offen")
poll([f"buffer_load_dwordx4 v[72:75], v29, {sWS}, 0 offen sc1"], [72, 73, 74, 75], "v16")
poll([f"buffer_load_dwordx4 v[64:67], v27, {sWS}, 0 offen sc1",
      f"buffer_load_dwordx4 v[68:71], v28, {sWS}, 0 offen sc1"], list(range(64, 72)), "v16")
ts()
for r in range(4): E(f"v_add_f32 v{64+r}, v{64+r}, v{68+r}")
rowsum([f"v{64+r}" for r in range(4)] + [f"v{72+r}" for r in range(4)], rots=(8, 4))
C("8 values per lane -> across rows: (s_r , y_r) swap32 ; then pairs swap16")
E("s_nop 1")
for r in range(4): E(f"v_permlane32_swap_b32 v{64+r}, v{72+r}")
E("s_nop 1")
for r in range(4): E(f"v_add_f32 v{64+r}, v{64+r}, v{72+r}")
E("s_nop 1")
for r in range(2): E(f"v_permlane16_swap_b32 v{64+r}, v{66+r}")
E("s_nop 1")
for r in range(2): E(f"v_add_f32 v{64+r}, v{64+r}, v{66+r}")
C("FIN[which][m16 = (n&3)*4 + (g&1)*2 + k][w]")
E(f"v_lshrrev_b32 v26, 1, {G}"); E("v_lshlrev_b32 v26, 9, v26"); E(f"v_and_b32 v27, 3, {N}"); E("v_lshl_add_u32 v26, v27, 7, v26")
E(f"v_and_b32 v27, 1, {G}"); E("v_lshl_add_u32 v26, v27, 6, v26")
E(f"s_lshl_b32 s64, {WV}, 2"); E(f"s_add_u32 s64, s64, {FIN}"); E("v_add_u32 v26, s64, v26")
E("ds_write_b32 v26, v64"); E("ds_write_b32 v26, v65 offset:32")
E(f"v_lshlrev_b32 v27, 5, {N}"); E(f"v_add_u32 v27, {FIN}, v27")
E("s_waitcnt lgkmcnt(0)")
E("s_barrier")
E(f"s_cmp_lg_u32 {WV}, 0"); E("s_cbranch_scc1 DONE")
E("ds_read_b128 v[64:67], v27"); E("ds_read_b128 v[68:71], v27 offset:16")
E("ds_read_b128 v[72:75], v27 offset:512"); E("ds_read_b128 v[76:79], v27 offset:528")
E("s_waitcnt lgkmcnt(0)")
for base in (64, 72):
    for st in (4, 2, 1):
        for k in range(st): E(f"v_add_f32 v{base+k}, v{base+k}, v{base+k+st}")
rnd_bf16_pair("v64", "v72", "v12")
E("v_lshlrev_b32 v40, 16, v40"); E("v_lshlrev_b32 v41, 16, v41")
E("v_add_f32 v72, v72, v41")
E("v_cvt_pk_bf16_f32 v12, v72, v72"); E("v_lshlrev_b32 v72, 16, v12")
E("v_mul_f32 v13, 0xbfb8aa3b, v72"); E("v_exp_f32 v13, v13"); E("s_nop 0"); E("v_add_f32 v13, 1.0, v13"); E("v_rcp_f32 v13, v13"); E("s_nop 0")
E("v_mul_f32 v72, v72, v13")
E("v_cvt_pk_bf16_f32 v12, v72, v72"); E("v_lshlrev_b32 v72, 16, v12")
E("v_mul_f32 v64, v64, v72")
E("v_cvt_pk_bf16_f32 v12, v64, v64"); E("v_lshlrev_b32 v64, 16, v12")
E("v_add_f32 v64, v64, v40")
E("v_cvt_pk_bf16_f32 v12, v64, v64")
E(f"v_cmp_gt_u32 vcc, 16, {LANE}"); E(f"v_cndmask_b32 v30, {VOOB}, v30, vcc")
E("s_lshl_b32 s64, s71, 5")
E(f"buffer_store_short v12, v30, {sOUT}, s64 offen")
C("epoch update by reducer 0")
E("s_cmp_lg_u32 s71, 0"); E("s_cbranch_scc1 DONE")
E(f"v_mov_b32 v13, {TAG}"); E("v_mov_b32 v14, 0")
E(f"v_cmp_eq_u32 vcc, 0, {LANE}"); E(f"v_cndmask_b32 v14, {VOOB}, v14, vcc")
E(f"buffer_store_dword v13, v14, {sWS}, 0 offen sc1")
L("DONE")
if TS >= 0:
    ts()
    E(f"s_cmp_lg_u32 s2, {TS}"); E("s_cbranch_scc1 END")
    E(f"s_cmp_lg_u32 {WV}, 0"); E("s_cbranch_scc1 END")
    E(f"v_lshlrev_b32 v12, 2, {LANE}")
    E("v_mov_b32 v13, 0")
    for i in range(tsn[0]): E(f"v_writelane_b32 v13, s{72+i}, {i}")
    E("buffer_store_dword v13, v12, s[96:99], 0 offen")
L("END")

hdr = open(f"cdna_kernels/{NAME}.s.ref").read().split("\n")
top = []
for ln in hdr:
    if ln.startswith("; @launch"):
        top.append(f"; @launch grid=(256,1,1) block=(512,1,1) lds={LDS_SIZE}")
    elif ln.startswith(f"{NAME}_kernel:"):
        top.append(ln); break
    else: top.append(ln)
tail = []
f = False
for ln in hdr:
    if ln.startswith("s_endpgm"): f = True
    if f: tail.append(ln)
open(sys.argv[1], "w").write("\n".join(top + out + tail))
```
